```python
import torch

def _softmax(x, axis=-1):
    return torch.softmax(x, dim=axis)
def _gelu(x):
    return torch.nn.functional.gelu(x, approximate="tanh")
def _silu(x):
    return torch.nn.functional.silu(x)
def _sigmoid(x):
    return torch.sigmoid(x)
def _layernorm(x, axis=-1, eps=1e-5):
    m = x.mean(dim=axis, keepdim=True)
    v = x.var(dim=axis, keepdim=True, unbiased=False)
    return (x - m) / torch.sqrt(v + eps)
def _scatter_add(tgt, idx, src, axis=0):
    return tgt.clone().index_add_(axis, idx, src)
def _segment_sum(src, seg, n):
    out = torch.zeros((n,) + src.shape[1:], dtype=src.dtype)
    return out.index_add_(0, seg, src)
def _pad(x, pw):
    flat = tuple(v for pair in reversed(pw) for v in pair)
    return torch.nn.functional.pad(x, flat)

kernel_name = 'concat_heads__ssm_conv_s4d__ssm_conv_h3__prompt'

def setup_inputs():

    _w = (lambda a: (lambda t: t.to(torch.bfloat16) if t.is_floating_point() else t)(torch.as_tensor(a)))
    def _A_setup():
        Bsz, L, D, N = 1, 2048, 640, 128
        return {
            "u": _w((lambda *s: torch.randn(*s, dtype=torch.bfloat16) * 0.05)(Bsz, L, D)),
            "log_A_real": _w((lambda *s: torch.randn(*s, dtype=torch.bfloat16) * 3.2)(D, N) * 0.5),
            "A_imag": _w((lambda *s: torch.randn(*s, dtype=torch.bfloat16) * 0.05)(D, N) * 3.14),
            "C_real": _w((lambda *s: torch.randn(*s, dtype=torch.bfloat16) * 0.1)(D, N) / N ** 0.5),
            "C_imag": _w((lambda *s: torch.randn(*s, dtype=torch.bfloat16) * 0.1)(D, N) / N ** 0.5),
            "log_dt": _w((lambda *s: torch.randn(*s, dtype=torch.bfloat16) * 0.05)(D) * 0.5 - 4.0),
            "D_skip": _w((lambda *s: torch.randn(*s, dtype=torch.bfloat16) * 0.05)(D)),
        }
    _A_in = _A_setup()

    def _B_setup():
        B, S, D = 1, 2048, 640
        ks = 4
        return {
            "q": _w((lambda *s: torch.randn(*s, dtype=torch.bfloat16) * 0.05)(B, S, D)),
            "k": _w((lambda *s: torch.randn(*s, dtype=torch.bfloat16) * 0.4)(B, S, D)),
            "v": _w((lambda *s: torch.randn(*s, dtype=torch.bfloat16) * 0.2)(B, S, D)),
            "shift_k": _w((lambda *s: torch.randn(*s, dtype=torch.bfloat16) * 0.4)(D, ks) * 0.5),
            "ssm_k": _w((lambda *s: torch.randn(*s, dtype=torch.bfloat16) * 0.4)(D, S) * (1.0 / S ** 0.5)),
            "ssm_D": _w((lambda *s: torch.randn(*s, dtype=torch.bfloat16) * 0.2)(D)),
        }
    _B_in = _B_setup()

    return {
        "A_u": _A_in["u"],
        "A_log_A_real": _A_in["log_A_real"],
        "A_A_imag": _A_in["A_imag"],
        "A_C_real": _A_in["C_real"],
        "A_C_imag": _A_in["C_imag"],
        "A_log_dt": _A_in["log_dt"],
        "A_D_skip": _A_in["D_skip"],
        "B_q": _B_in["q"],
        "B_k": _B_in["k"],
        "B_v": _B_in["v"],
        "B_shift_k": _B_in["shift_k"],
        "B_ssm_k": _B_in["ssm_k"],
        "B_ssm_D": _B_in["ssm_D"],
    }

def reference(A_u, A_log_A_real, A_A_imag, A_C_real, A_C_imag, A_log_dt, A_D_skip, B_q, B_k, B_v, B_shift_k, B_ssm_k, B_ssm_D):
    def _A_ref(u, log_A_real, A_imag, C_real, C_imag, log_dt, D_skip):
        L = u.shape[1]
        dt = torch.exp(log_dt)
        A = -torch.exp(log_A_real) + 1j * A_imag
        C = (C_real + 1j * C_imag) * dt[:, None]
        pos = (lambda x, dt: x.to(dt))(torch.arange(L), log_dt.dtype)
        P = torch.exp((A * dt[:, None])[:, :, None] * pos[None, None, :])
        K = 2.0 * torch.einsum("dn,dnl->dl", C, P).real
        L2 = 2 * L
        u_t = (lambda x, *d: x.permute(*d))(u, 0, 2, 1)
        Kf = (lambda x, *a, **k: torch.fft.rfft(x.float(), *a, **k))(K, L2)
        Uf = (lambda x, *a, **k: torch.fft.rfft(x.float(), *a, **k))(u_t, L2)
        y = (lambda x, *a, **k: torch.fft.irfft(x, *a, **k).to(torch.bfloat16))(Uf * Kf[None, :, :], L2)[:, :, :L]
        y = (lambda x, *d: x.permute(*d))(y, 0, 2, 1)
        return y + u * D_skip[None, None, :]

    def _B_ref(q, k, v, shift_k, ssm_k, ssm_D):
        B, S, D = q.shape
        ks = shift_k.shape[-1]
        k_pad = _pad(k, ((0, 0), (ks - 1, 0), (0, 0)))
        k_shift = torch.zeros_like(k)
        for t in range(ks):
            k_shift = k_shift + k_pad[:, t:t + S, :] * shift_k[:, ks - 1 - t][None, None, :]
        kv = k_shift * v
        L = 2 * S
        kv_pad = _pad(kv, ((0, 0), (0, S), (0, 0)))
        kf_pad = _pad(ssm_k, ((0, 0), (0, S)))
        kv_f = (lambda x, axes=(-2,-1): torch.fft.rfft2(x.float(), dim=axes))(kv_pad[:, None, :, :], axes=(1, 2))
        kf_f = (lambda x, axes=(-2,-1): torch.fft.rfft2(x.float(), dim=axes))(kf_pad[:, None, :], axes=(1, 2))
        kf_f = (lambda x, *d: x.permute(*d))(kf_f, 1, 2, 0)
        y_f = kv_f * kf_f[None, :, :, :]
        y = (lambda x, s, axes=(-2,-1): torch.fft.irfft2(x, s=s, dim=axes).to(torch.bfloat16))(y_f, (1, L), axes=(1, 2))[:, 0, :S, :]
        y = y + kv * ssm_D[None, None, :]
        return q * y

    a = _A_ref(A_u, A_log_A_real, A_A_imag, A_C_real, A_C_imag, A_log_dt, A_D_skip)
    b = _B_ref(B_q, B_k, B_v, B_shift_k, B_ssm_k, B_ssm_D)
    return torch.concatenate([a, b], axis=-1)
```

```python
import re

TRANS = ('v_exp_f32', 'v_log_f32', 'v_rcp_f32', 'v_rsq_f32', 'v_sqrt_f32', 'v_sin_f32', 'v_cos_f32')

def regs_of(op):
    op = op.strip()
    if op.startswith('-'): op = op[1:]
    if op.startswith('abs(') or op.startswith('|'):
        op = op.strip('|').replace('abs(', '').rstrip(')')
    m = re.fullmatch(r'([vsa])\[(\d+):(\d+)\]', op)
    if m: return {f'{m.group(1)}{i}' for i in range(int(m.group(2)), int(m.group(3)) + 1)}
    m = re.fullmatch(r'([vsa])(\d+)', op)
    if m: return {op}
    if op in ('vcc', 'exec', 'm0', 'scc'): return {op}
    if op in ('vcc_lo', 'vcc_hi'): return {'vcc'}
    if op in ('exec_lo', 'exec_hi'): return {'exec'}
    return set()

class Ins:
    __slots__ = ('text', 'op', 'kind', 'defs', 'uses', 'ops', 'tag', 'srcC', 'srcAB', 'comment')
    def __init__(self, text, tag=None):
        self.text = text.strip()
        self.tag = tag
        self.srcC = set(); self.srcAB = set()
        t = self.text.split(';')[0].strip()
        parts = t.split(None, 1)
        self.op = parts[0] if parts else ''
        rest = parts[1] if len(parts) > 1 else ''
        ops = []; cur = ''; depth = 0
        for ch in rest:
            if ch == '[': depth += 1
            if ch == ']': depth -= 1
            if ch == ',' and depth == 0: ops.append(cur.strip()); cur = ''
            else: cur += ch
        if cur.strip(): ops.append(cur.strip())
        if ops:
            last = ops[-1].split()
            ops[-1] = last[0]
        self.ops = ops
        self.defs = set(); self.uses = set()
        op = self.op
        R = [regs_of(o) for o in ops]
        allr = lambda idx: set().union(*[R[i] for i in idx if i < len(R)]) if idx else set()
        n = len(ops)
        if op.endswith(':') or op == '' or op.startswith('.'):
            self.kind = 'label'
        elif op.startswith('v_mfma'):
            self.kind = 'mfma'
            self.defs = R[0]; self.srcAB = R[1] | R[2]; self.srcC = R[3]; self.uses = self.srcAB | self.srcC | {'exec'}
        elif op.startswith('ds_read') or op.startswith('ds_bpermute') or op.startswith('ds_swizzle'):
            self.kind = 'lds_r'
            self.defs = R[0]; self.uses = allr(range(1, n))
        elif op.startswith('ds_write'):
            self.kind = 'lds_w'
            self.uses = allr(range(0, n))
        elif op.startswith('buffer_load') or op.startswith('global_load'):
            if t.rstrip().endswith(' lds') or ' lds ' in t + ' ' or 'load_lds' in op:
                self.kind = 'vm_dma'
                self.uses = allr(range(0, n)) | {'m0'}
            else:
                self.kind = 'vm_ld'
                self.defs = R[0]; self.uses = allr(range(1, n))
        elif op.startswith('buffer_store') or op.startswith('global_store'):
            self.kind = 'vm_st'
            self.uses = allr(range(0, n))
        elif op.startswith('s_load') :
            self.kind = 'smem'; self.defs = R[0]; self.uses = allr(range(1, n))
        elif op in ('s_memtime', 's_memrealtime'):
            self.kind = 'smem'; self.defs = R[0]
        elif op == 's_waitcnt': self.kind = 'wait'
        elif op == 's_nop': self.kind = 'nop'
        elif op == 's_barrier': self.kind = 'barrier'
        elif op.startswith('s_cbranch') or op == 's_branch' or op == 's_endpgm': self.kind = 'branch'
        elif op.startswith('s_cmp'):
            self.kind = 'salu'; self.uses = allr(range(0, n)); self.defs = {'scc'}
        elif op in ('s_setprio',): self.kind = 'salu'
        elif op.startswith('s_'):
            self.kind = 'salu'; self.defs = R[0]; self.uses = allr(range(1, n))
            if op.endswith('saveexec_b64'): self.defs = self.defs | {'exec'}; self.uses |= {'exec'}
        elif op.startswith('v_cmp'):
            self.kind = 'valu'; self.defs = R[0]; self.uses = allr(range(1, n))
        elif op.startswith('v_readfirstlane') or op.startswith('v_readlane'):
            self.kind = 'valu'; self.defs = R[0]; self.uses = allr(range(1, n))
        elif op.startswith('v_'):
            self.kind = 'trans' if any(op.startswith(x) for x in TRANS) else 'valu'
            self.defs = R[0]; self.uses = allr(range(1, n))
            if op.startswith('v_fmac') or op.startswith('v_writelane') or op.startswith('v_dot2c'): self.uses |= R[0]
            if op.startswith('v_cndmask') and n == 3: self.uses |= {'vcc'}
            if op.startswith('v_permlane') and 'swap' in op: self.defs = R[0] | R[1]; self.uses = R[0] | R[1]
            if '_co_' in op: self.defs = R[0] | R[1]; self.uses = allr(range(2, n))
            if 'dpp' in self.text and ('row_mask' in self.text or 'bound_ctrl' not in self.text): self.uses |= R[0]
        else:
            raise ValueError('unknown instruction: ' + text)
    def __repr__(self): return self.text

def parse_wait(text):
    vm = lg = None
    m = re.search(r'vmcnt\((\d+)\)', text)
    if m: vm = int(m.group(1))
    m = re.search(r'lgkmcnt\((\d+)\)', text)
    if m: lg = int(m.group(1))
    return vm, lg

def insert_waits(ins):
    out = []
    lds = []
    vm = []
    smem = set()
    for x in ins:
        if x.kind == 'wait':
            v, l = parse_wait(x.text)
            if v is not None: vm = vm[len(vm) - v:] if v < len(vm) else vm; vm = vm if v > 0 else []
            if l is not None:
                lds = lds[len(lds) - l:] if l < len(lds) else lds
                if l == 0: lds = []; smem = set()
            out.append(x); continue
        touched = x.uses | x.defs
        need_l = None; need_v = None
        for i, d in enumerate(lds):
            if d & touched: need_l = len(lds) - 1 - i
        for i, d in enumerate(vm):
            if d & touched: need_v = len(vm) - 1 - i
        if smem & touched:
            need_l = 0
        if need_l is not None or need_v is not None:
            s = 's_waitcnt'
            if need_v is not None:
                nv = min(need_v, 63); s += f' vmcnt({nv})'
                vm = vm[len(vm) - nv:] if nv > 0 else []
            if need_l is not None:
                nl = min(need_l, 15)
                if smem and nl > 0 and (smem & touched): nl = 0
                s += f' lgkmcnt({nl})'
                lds = lds[len(lds) - nl:] if nl > 0 else []
                if nl == 0: smem = set()
            out.append(Ins(s))
        if x.kind in ('lds_r',): lds.append(set(x.defs))
        elif x.kind == 'lds_w': lds.append(set())
        elif x.kind == 'vm_ld': vm.append(set(x.defs))
        elif x.kind in ('vm_st', 'vm_dma'): vm.append(set())
        elif x.kind == 'smem':
            smem |= x.defs
            assert not lds, 'smem issued with LDS ops outstanding: ' + x.text
        out.append(x)
    return out

def wait_states(x):
    if x.kind == 'nop': return int(x.ops[0]) + 1
    if x.kind == 'label': return 0
    return 1

def pad_hazards(ins):
    out = []
    W = 14
    def isv(r): return r[0] in 'va'
    for x in ins:
        if x.kind in ('label',):
            out.append(x); continue
        need = 0
        dist = 0
        for p in reversed(out[-40:]):
            if p.kind == 'label': continue
            req = 0
            pv = {r for r in p.defs if isv(r)}
            ps = {r for r in p.defs if not isv(r)}
            xv_use = {r for r in x.uses if isv(r)}
            if p.kind in ('valu', 'trans'):
                if x.kind == 'mfma' and (pv & x.uses): req = max(req, 2)
                if p.kind == 'trans' and x.kind in ('valu', 'mfma') and (pv & x.uses): req = max(req, 1)
                if p.kind == 'trans' and x.kind in ('lds_w', 'vm_st', 'lds_r', 'vm_ld') and (pv & x.uses): req = max(req, 1)
                if (x.op.startswith('v_readfirstlane') or x.op.startswith('v_readlane')) and (pv & x.uses): req = max(req, 1)
                if ('dpp' in x.text or x.op.startswith('v_permlane')) and (pv & x.uses): req = max(req, 2)
                if ps:
                    if x.kind in ('valu', 'trans') and (ps & x.uses): req = max(req, 2)
                    if x.kind in ('vm_ld', 'vm_st', 'vm_dma') and (ps & x.uses): req = max(req, 5)
                    if x.kind in ('salu', 'smem', 'branch') and (ps & x.uses): req = max(req, 4)
                    if 'exec' in ps and x.kind == 'mfma': req = max(req, 4)
            if p.kind == 'mfma':
                if x.kind == 'mfma':
                    if p.defs & x.srcAB: req = max(req, 8)
                    if (p.defs & x.srcC) and p.defs != x.srcC: req = max(req, 6)
                    if (p.defs & x.defs) and p.defs != x.srcC: req = max(req, 6)
                elif x.kind in ('valu', 'trans', 'lds_r', 'lds_w', 'vm_ld', 'vm_st', 'vm_dma'):
                    if p.defs & (x.uses | x.defs): req = max(req, 8)
                    if x.kind in ('valu', 'trans') and (p.srcC & x.defs): req = max(req, 3)
            if p.kind == 'salu' and 'm0' in p.defs and x.kind == 'vm_dma': req = max(req, 1)
            if p.kind == 'vm_st' and ('x4' in p.op or 'x3' in p.op) and x.kind in ('valu', 'trans') and (regs_of(p.ops[0]) & x.defs): req = max(req, 2)
            if p.kind == 'salu' and 'exec' in p.defs and x.op.startswith('ds_read_b64_tr'): req = max(req, 1)
            if req > dist: need = max(need, req - dist)
            dist += wait_states(p)
            if dist >= W: break
        while need > 0:
            k = min(need, 16)
            out.append(Ins(f's_nop {k - 1}'))
            need -= k
        out.append(x)
    return out

def finalize(lines):
    ins = [l if isinstance(l, Ins) else Ins(l) for l in lines]
    ins = insert_waits(ins)
    ins = pad_hazards(ins)
    return ins

def merge(backbone, side, gate_side=None, gate_back=None, rate=None):
    gate_side = gate_side or {}
    gate_back = gate_back or {}
    out = []
    def emit(x):
        if isinstance(x, list): out.extend(x)
        else: out.append(x)
    si = 0
    nM = sum(1 for b in backbone if b.kind == 'mfma')
    seenM = 0
    for j, b in enumerate(backbone):
        g = gate_back.get(j, 0)
        while si < g:
            assert gate_side.get(si, 0) <= j, f'gate deadlock side {si} back {j}'
            emit(side[si]); si += 1
        out.append(b)
        if b.kind == 'mfma':
            seenM += 1
            remM = nM - seenM + 1
            k = rate if rate is not None else -(-(len(side) - si) // remM)
            cnt = 0
            while si < len(side) and cnt < k and gate_side.get(si, 0) <= j + 1:
                emit(side[si]); si += 1; cnt += 1
    while si < len(side):
        emit(side[si]); si += 1
    return out
```

```python
import sys
from asmlib import Ins, finalize, merge, regs_of

NAME = 'concat_heads__ssm_conv_s4d__ssm_conv_h3__prompt_kernel'
DUMP = None
STAMP = False
for a in sys.argv[1:]:
    if a.startswith('dump='): DUMP = a[5:]
    if a == 'stamp': STAMP = True

RS = 1152; CS = 4624; XB = 0
KS = 4128; KB = XB + 8 * CS
ZS = 4672; ZB = KB + 8 * KS
SCR_ROW = 544; SCR = 16 * SCR_ROW
SCR_LO = ZB
SCR_HI = ZB + 8 * ZS
LDS_TOTAL = SCR_HI + 4 * SCR
assert 4 * SCR <= 8 * ZS

vTID, vL = 0, 1
vA, vB, vZw, vZr, vOut, vBp, vRow, vXw, vRowH, vT0, vT1 = 2, 3, 4, 5, 6, 7, 8, 9, 10, 11, 12
vCo = 12
AF = 16
ACC = 80
BR = 144
BX, BY = 160, 180
T = 200
QA, QB = 216, 224
RP = [232, 236]
CC = 240
PK = 242
ZR = 244
NVGPR = 248

sG, sW, sT0, sT1, sT2 = 3, 4, 5, 6, 7
SRD_X0, SRD_X1, SRD_Q, SRD_K, SRD_O = 8, 12, 16, 20, 24
sM0, sM8 = 40, 42
sHI = 44
sOff = 45
sOff2 = 46
sSel = 48
PTR = 64
def ptr(i): return f's[{PTR + 2*i}:{PTR + 2*i + 1}]'

def vr(b, n=1): return f'v{b}' if n == 1 else f'v[{b}:{b + n - 1}]'
def sr(b, n=1): return f's{b}' if n == 1 else f's[{b}:{b + n - 1}]'

class Code(list):
    def __call__(self, s, **kw):
        for line in s.strip().split('\n'):
            line = line.strip()
            if line: self.append(Ins(line))
        return self

def srd(c, base, ptr_idx, nbytes):
    c(f's_mov_b32 s{base}, s{PTR + 2*ptr_idx}')
    c(f's_and_b32 s{base+1}, s{PTR + 2*ptr_idx + 1}, 0xffff')
    c(f's_mov_b32 s{base+2}, {nbytes}')
    c(f's_mov_b32 s{base+3}, 0x20000')

def stamp(c, idx):
    if not STAMP: return
    c(f's_memtime s[{92}:{93}]')
    c('s_waitcnt lgkmcnt(0)')
    c(f'v_writelane_b32 v250, s92, {idx}')

def common_addr(c, isB):
    t0, t1, t2, t3 = T, T + 1, T + 2, T + 3
    c(f'v_and_b32 v{t0}, 15, v{vL}')
    c(f'v_lshrrev_b32 v{t1}, 4, v{vL}')
    c(f'v_and_b32 v{t2}, 7, v{vL}')
    c(f'v_lshrrev_b32 v{t3}, 3, v{vL}')
    a, b = T + 4, T + 5
    c(f'v_lshrrev_b32 v{a}, 2, v{t0}')
    c(f'v_and_b32 v{b}, 3, v{t0}')
    c(f'v_add_u32 v{a}, v{a}, v{b}')
    c(f'v_lshlrev_b32 v{a}, 3, v{a}')
    c(f'v_lshl_add_u32 v{a}, v{t1}, 6, v{a}')
    c(f's_mul_i32 s{sT0}, s{sW}, {KS}')
    c(f's_add_u32 s{sT0}, s{sT0}, {KB + 8}')
    c(f'v_add_u32 v{vA}, s{sT0}, v{a}')
    c(f'v_lshlrev_b32 v{a}, 4, v{t1}')
    c(f'v_lshlrev_b32 v{b}, 3, v{t0}')
    c(f'v_sub_u32 v{a}, v{a}, v{b}')
    c(f's_mul_i32 s{sT0}, s{sW}, {CS}')
    c(f's_add_u32 s{sT0}, s{sT0}, {XB + 120}')
    c(f'v_add_u32 v{vB}, s{sT0}, v{a}')
    c(f'v_lshlrev_b32 v{a}, 5, v{t0}')
    c(f'v_lshl_add_u32 v{a}, v{t1}, 3, v{a}')
    c(f'v_lshrrev_b32 v{b}, 2, v{t0}')
    c(f'v_lshl_add_u32 v{a}, v{b}, 4, v{a}')
    c(f's_mul_i32 s{sT0}, s{sW}, {ZS}')
    c(f's_add_u32 s{sT0}, s{sT0}, {ZB}')
    c(f'v_add_u32 v{vZw}, s{sT0}, v{a}')
    c(f'v_mul_u32_u24 v{a}, {ZS}, v{t2}')
    c(f'v_lshl_add_u32 v{a}, v{t3}, 4, v{a}')
    c(f's_mul_i32 s{sT0}, s{sW}, 144')
    c(f's_add_u32 s{sT0}, s{sT0}, {ZB}')
    c(f'v_add_u32 v{vZr}, s{sT0}, v{a}')
    c(f'v_mul_u32_u24 v{a}, {CS}, v{t2}')
    c(f'v_lshlrev_b32 v{b}, 2, v{t3}')
    c(f'v_sub_u32 v{a}, v{a}, v{b}')
    c(f's_lshl_b32 s{sT0}, s{sW}, 5')
    c(f's_sub_u32 s{sT0}, {XB + 252}, s{sT0}')
    c(f'v_add_u32 v{vXw}, s{sT0}, v{a}')
    c(f'v_mul_u32_u24 v{a}, {8*1280}, v{t3}')
    c(f'v_lshl_add_u32 v{a}, v{t2}, 1, v{a}')
    c(f's_mul_i32 s{sT0}, s{sW}, {64*1280}')
    c(f's_lshl_b32 s{sT1}, s{sG}, 4')
    c(f's_add_u32 s{sT0}, s{sT0}, s{sT1}')
    c(f'v_add_u32 v{vRow}, s{sT0}, v{a}')
    c(f'v_mul_u32_u24 v{a}, {8*2560}, v{t3}')
    c(f'v_lshl_add_u32 v{a}, v{t2}, 1, v{a}')
    c(f's_mul_i32 s{sT0}, s{sW}, {64*2560}')
    c(f's_add_u32 s{sT0}, s{sT0}, s{sT1}')
    if isB: c(f's_add_u32 s{sT0}, s{sT0}, 1280')
    c(f'v_add_u32 v{vOut}, s{sT0}, v{a}')
    c(f'v_add_u32 v{a}, 47, v{vL}')
    c(f'v_subrev_u32 v{b}, 16, v{vL}')
    c(f'v_cmp_gt_u32 vcc, 16, v{vL}')
    c(f'v_cndmask_b32 v{a}, v{b}, v{a}, vcc')
    c(f'v_mov_b32 v{b}, 63')
    c(f'v_cmp_eq_u32 vcc, 0, v{vL}')
    c(f'v_cndmask_b32 v{a}, v{a}, v{b}, vcc')
    c(f'v_lshlrev_b32 v{vBp}, 2, v{a}')
    c(f's_mov_b64 s[{sM0}:{sM0+1}], 1')
    c(f's_mov_b64 s[{sM8}:{sM8+1}], 0xff')
    c(f's_mov_b32 s{sHI}, 0xffff0000')

def zero_pads(c):
    a, b = T + 4, T + 5
    c(f'v_lshrrev_b32 v{a}, 4, v{vL}')
    c(f'v_mul_u32_u24 v{a}, {RS}, v{a}')
    c(f'v_and_b32 v{b}, 15, v{vL}')
    c(f'v_lshl_add_u32 v{a}, v{b}, 3, v{a}')
    c(f's_mul_i32 s{sT0}, s{sW}, {CS}')
    c(f's_add_u32 s{sT0}, s{sT0}, {XB + 1024}')
    c(f'v_add_u32 v{a}, s{sT0}, v{a}')
    c(f'v_mov_b32 v{T+6}, 0')
    c(f'v_mov_b32 v{T+7}, 0')
    c(f'ds_write_b64 v{a}, v[{T+6}:{T+7}]')
    c(f'v_and_b32 v{b}, 3, v{vL}')
    c(f'v_lshlrev_b32 v{b}, 3, v{b}')
    c(f's_mul_i32 s{sT0}, s{sW}, {KS}')
    c(f's_add_u32 s{sT0}, s{sT0}, {KB}')
    c(f'v_add_u32 v{b}, s{sT0}, v{b}')
    c(f'ds_write_b64 v{b}, v[{T+6}:{T+7}]')

def afrag_reads(ms):
    c = Code()
    for m in ms:
        c(f'ds_read_b64_tr_b16 v[{AF+4*m}:{AF+4*m+1}], v{vA} offset:{256*m}')
        c(f'ds_read_b64_tr_b16 v[{AF+4*m+2}:{AF+4*m+3}], v{vA} offset:{256*m+32}')
    return c

PARTS = [([0, 1, 2, 3], {0: 0, 1: 1, 2: 2, 3: 3}), ([4, 5], {4: 0, 5: 1}), ([6, 7], {6: 2, 7: 3})]

def frag_list():
    fr = []
    def add(p, betas):
        tiles, slots = PARTS[p]
        for beta in betas:
            for rho in range(4):
                ms = [(J, 2*J - beta, slots[J], beta == -1) for J in tiles if 0 <= 2*J - beta <= 2*J + 1]
                if ms: fr.append((p, beta, rho, ms))
    add(0, range(-1, 7))
    add(1, range(-1, 11))
    add(2, range(-1, 15))
    return fr

def stage_of_beta(beta):
    return max(0, (128 * beta + 256 - 1) // 512)

LOOK = 3
def backbone():
    fr = frag_list()
    items = []
    def reads(k):
        p, beta, rho, ms = fr[k]
        b = BR + 4 * (k % 4)
        off = rho * RS + 64 * (14 - beta)
        st = stage_of_beta(beta)
        items.append((Ins(f'ds_read_b64 v[{b}:{b+1}], v{vB} offset:{off}'), dict(stage=st, part=p)))
        items.append((Ins(f'ds_read_b64 v[{b+2}:{b+3}], v{vB} offset:{off+8}'), dict(stage=st, part=p)))
    for k in range(min(LOOK, len(fr))): reads(k)
    for k, (p, beta, rho, ms) in enumerate(fr):
        if k + LOOK < len(fr): reads(k + LOOK)
        b = BR + 4 * (k % 4)
        for (J, m, slot, first) in ms:
            d = ACC + 16 * slot + 4 * rho
            cc = '0' if first else f'v[{d}:{d+3}]'
            info = dict(J=J, m=m, slot=slot, first=first, last=(beta == 2*J and rho == 3), part=p, beta=beta, rho=rho)
            items.append((Ins(f'v_mfma_f32_16x16x32_bf16 v[{d}:{d+3}], v[{AF+4*m}:{AF+4*m+3}], v[{b}:{b+3}], {cc}'), info))
    return items

def epilogue(J, slot):
    c = Code()
    Z = lambda rho, i: ACC + 16 * slot + 4 * rho + i
    rn = RP[J % 2]; rp = RP[(J + 1) % 2]
    c0, c1 = CC, CC + 1
    c(f'v_add_f32 v{c0}, v{Z(1,3)}, v{Z(2,2)}')
    c(f'v_add_f32 v{c1}, v{Z(2,3)}, v{Z(3,2)}')
    c(f'v_add_f32 v{c0}, v{c0}, v{Z(3,1)}')
    c(f'ds_bpermute_b32 v{rn+2}, v{vBp}, v{Z(3,3)}')
    c(f'ds_bpermute_b32 v{rn+1}, v{vBp}, v{c1}')
    c(f'ds_bpermute_b32 v{rn}, v{vBp}, v{c0}')
    c(f'v_add_f32 v{Z(0,1)}, v{Z(0,1)}, v{Z(1,0)}')
    c(f'v_add_f32 v{Z(0,2)}, v{Z(0,2)}, v{Z(1,1)}')
    c(f'v_add_f32 v{Z(0,3)}, v{Z(0,3)}, v{Z(1,2)}')
    c(f'v_add_f32 v{Z(0,2)}, v{Z(0,2)}, v{Z(2,0)}')
    c(f'v_add_f32 v{Z(0,3)}, v{Z(0,3)}, v{Z(2,1)}')
    c(f'v_add_f32 v{Z(0,3)}, v{Z(0,3)}, v{Z(3,0)}')
    c(f'v_cndmask_b32 v{rp+2}, v{rn+2}, v{rp+2}, s[{sM0}:{sM0+1}]')
    c(f'v_cndmask_b32 v{rp+1}, v{rn+1}, v{rp+1}, s[{sM0}:{sM0+1}]')
    c(f'v_cndmask_b32 v{rp}, v{rn}, v{rp}, s[{sM0}:{sM0+1}]')
    c(f'v_add_f32 v{Z(0,2)}, v{Z(0,2)}, v{rp+2}')
    c(f'v_add_f32 v{Z(0,1)}, v{Z(0,1)}, v{rp+1}')
    c(f'v_add_f32 v{Z(0,0)}, v{Z(0,0)}, v{rp}')
    c(f'v_cvt_pk_bf16_f32 v{PK+1}, v{Z(0,2)}, v{Z(0,3)}')
    c(f'v_cvt_pk_bf16_f32 v{PK}, v{Z(0,0)}, v{Z(0,1)}')
    c(f'ds_write_b64 v{vZw}, v[{PK}:{PK+1}] offset:{576*J}')
    return c

def out_pass(o, isB, qbuf):
    c = Code()
    c(f'ds_read_b128 v[{ZR}:{ZR+3}], v{vZr} offset:{1152*o}')
    if isB:
        for j in range(4):
            c(f'v_lshlrev_b32 v{T+2*j}, 16, v{ZR+j}')
            c(f'v_and_b32 v{T+2*j+1}, s{sHI}, v{ZR+j}')
        for i in range(8):
            c(f'v_mul_f32 v{T+i}, v{T+i}, v{qbuf+i}')
        for j in range(4):
            c(f'v_cvt_pk_bf16_f32 v{T+8+j}, v{T+2*j}, v{T+2*j+1}')
        src = T + 8
    else:
        src = ZR
    for j in range(4):
        c(f's_mov_b32 s{sOff}, {o*512*2560 + j*5120}')
        c(f'buffer_store_short v{src+j}, v{vOut}, s[{SRD_O}:{SRD_O+3}], s{sOff} offen')
        c(f'buffer_store_short_d16_hi v{src+j}, v{vOut}, s[{SRD_O}:{SRD_O+3}], s{sOff} offen offset:2560')
    return c

def q_loads(o, qbuf):
    c = Code()
    for h in range(2):
        c(f's_mov_b32 s{sOff2}, {o*512*1280 + h*5120}')
        for i in range(4):
            c(f'buffer_load_short_d16_hi v{qbuf+4*h+i}, v{vRow}, s[{SRD_Q}:{SRD_Q+3}], s{sOff2} offen offset:{1280*i}')
    return c

def b_stage_loads(st, buf):
    c = Code()
    kf, vf, hl = buf, buf + 8, buf + 16
    c(f'v_add_u32 v{vRowH}, {st*512*1280 - 3840 & 0xffffffff}, v{vRow}')
    grp = Code()
    grp(f's_mov_b64 exec, s[{sM8}:{sM8+1}]')
    for j in range(3):
        grp(f'buffer_load_short_d16_hi v{hl+j}, v{vRowH}, s[{SRD_X0}:{SRD_X0+3}], 0 offen offset:{1280*j}')
    grp('s_mov_b64 exec, -1')
    c.append(list(grp))
    for h in range(2):
        c(f's_mov_b32 s{sOff2}, {st*512*1280 + h*5120}')
        for i in range(4):
            c(f'buffer_load_short_d16_hi v{kf+4*h+i}, v{vRow}, s[{SRD_X0}:{SRD_X0+3}], s{sOff2} offen offset:{1280*i}')
        for i in range(4):
            c(f'buffer_load_short_d16_hi v{vf+4*h+i}, v{vRow}, s[{SRD_X1}:{SRD_X1+3}], s{sOff2} offen offset:{1280*i}')
    return c

def b_prep(st, buf):
    c = Code()
    kf, vf, hl = buf, buf + 8, buf + 16
    h = T + 8
    bp = T + 12
    c(f'v_subrev_u32 v{bp}, 8, v{vL}')
    c(f'v_and_b32 v{bp}, 63, v{bp}')
    c(f'v_lshlrev_b32 v{bp}, 2, v{bp}')
    for j in range(3):
        c(f'ds_bpermute_b32 v{h+j}, v{bp}, v{kf+5+j}')
    for j in range(3):
        c(f'v_cndmask_b32 v{h+j}, v{h+j}, v{hl+j}, s[{sM8}:{sM8+1}]')
    def K(i): return kf + i if i >= 0 else h + 3 + i
    order = [3, 4, 5, 6, 7, 0, 1, 2]
    for i in order: c(f'v_mul_f32 v{T+i}, v{K(i)}, v{vCo}')
    for j in (1, 2, 3):
        for i in order: c(f'v_fmac_f32 v{T+i}, v{K(i-j)}, v{vCo+j}')
    for i in order: c(f'v_mul_f32 v{T+i}, v{T+i}, v{vf+i}')
    for i in range(4):
        c(f'v_cvt_pk_bf16_f32 v{T+8+i}, v{T+i+4}, v{T+i}')
    for i in range(4):
        c(f'ds_write_b32 v{vXw}, v{T+8+i} offset:{i*RS + 256*(3-st)}')
    return c

def flat(code):
    o = []
    for x in code:
        if isinstance(x, list): o.extend(x)
        else: o.append(x)
    return o

def barrier():
    return Code()('s_waitcnt lgkmcnt(0)\ns_barrier')

def conv_with_sides(isB):
    items = backbone()
    bb = [x for x, _ in items]
    info = [i for _, i in items]
    def first_read_stage(st):
        return next(k for k, i in enumerate(info) if 'stage' in i and i['stage'] >= st)
    def last_mfma(J): return next(k for k, i in enumerate(info) if i.get('J') == J and i.get('last'))
    def first_mfma_slot_part(p): return next(k for k, i in enumerate(info) if 'J' in i and i['part'] == p)
    def first_mfma_m_ge(m): return next(k for k, i in enumerate(info) if 'J' in i and i['m'] >= m)
    out = Code()
    if isB:
        cuts = [0, first_read_stage(1), first_read_stage(2), first_read_stage(3), len(bb)]
    else:
        cuts = [0, last_mfma(1) + 1, last_mfma(3) + 25, last_mfma(5) + 25, len(bb)]
    slots = {0: 0, 1: 1, 2: 2, 3: 3, 4: 0, 5: 1, 6: 2, 7: 3}
    def seg(k, blocks):
        lo, hi = cuts[k], cuts[k + 1]
        side = []; gs = {}; ends = {}
        for name, code, gate in blocks:
            gs[len(side)] = max(0, gate - lo)
            side += list(code)
            ends[name] = len(side)
        gb = {}
        for j in range(lo, hi):
            i = info[j]
            if 'J' in i and i['first'] and i['rho'] == 0 and i['J'] >= 4:
                nm = f'epi{i["J"]-4}'
                if nm in ends: gb[j - lo] = max(gb.get(j - lo, 0), ends[nm])
            if 'J' in i:
                for nm, mm in (('af8', 8), ('af12', 12)):
                    if i['m'] >= mm and nm in ends: gb[j - lo] = max(gb.get(j - lo, 0), ends[nm])
        return merge(bb[lo:hi], side, gs, gb)
    epi = lambda J: (f'epi{J}', epilogue(J, slots[J]), last_mfma(J) + 1 + 3)
    if isB:
        s1n = sum(1 for j in range(cuts[0], cuts[1]) if bb[j].kind == 'mfma')
        out += seg(0, [('ld2', b_stage_loads(2, BX), 0), epi(0),
                       ('prep1', b_prep(1, BY), last_mfma(0) + 1), ('bar', barrier(), 0)])
        out += seg(1, [('af8', afrag_reads(range(8, 12)), 0), epi(1), ('ld3', b_stage_loads(3, BY), 0), epi(2), ('q0', q_loads(0, QA), 0), ('q1', q_loads(1, QB), 0), epi(3),
                       ('prep2', b_prep(2, BX), 0), ('bar', barrier(), 0)])
        out += seg(2, [('af12', afrag_reads(range(12, 16)), 0), ('o0', out_pass(0, True, QA), 0), ('q2', q_loads(2, QA), 0), epi(4), ('o1', out_pass(1, True, QB), 0), ('q3', q_loads(3, QB), 0), epi(5),
                       ('prep3', b_prep(3, BY), 0), ('bar', barrier(), 0)])
        out += seg(3, [('o2', out_pass(2, True, QA), 0), epi(6), epi(7)])
        out += barrier()
        out += out_pass(3, True, QB)
    else:
        out += seg(0, [epi(0), ('af8', afrag_reads(range(8, 12)), 0)])
        out += seg(1, [epi(1), epi(2), epi(3), ('af12', afrag_reads(range(12, 16)), 0), ('bar', barrier(), 0)])
        out += seg(2, [('o0', out_pass(0, False, 0), 0), ('o1', out_pass(1, False, 0), 0), epi(4), epi(5), ('bar', barrier(), 0)])
        out += seg(3, [('o2', out_pass(2, False, 0), 0), epi(6), epi(7)])
        out += barrier()
        out += out_pass(3, False, 0)
    return out

def dump_lds(c, base, nbytes):
    c('s_waitcnt vmcnt(0) lgkmcnt(0)')
    c('s_barrier')
    c(f's_mov_b32 s{SRD_X0}, s{PTR+30-2*0}') if False else None
    c(f's_load_dwordx2 s[56:57], s[0:1], 120')
    c('s_waitcnt lgkmcnt(0)')
    c(f's_lshl_b32 s58, s2, 18')
    c(f's_add_u32 s56, s56, s58')
    c(f's_addc_u32 s57, s57, 0')
    c(f'v_lshlrev_b32 v{T}, 4, v{vTID}')
    for off in range(0, nbytes, 8192):
        c(f'v_add_u32 v{T+1}, {base + off}, v{T}')
        c(f'ds_read_b128 v[{T+4}:{T+7}], v{T+1}')
        c(f'v_add_u32 v{T+2}, {off}, v{T}')
        c(f'global_store_dwordx4 v{T+2}, v[{T+4}:{T+7}], s[56:57]')
    c('s_waitcnt vmcnt(0)')
    c('s_endpgm')

def path_B():
    c = Code()
    srd(c, SRD_X0, 8, 2048*640*2)
    srd(c, SRD_X1, 9, 2048*640*2)
    srd(c, SRD_Q, 7, 2048*640*2)
    srd(c, SRD_K, 11, 640*2048*2)
    srd(c, SRD_O, 13, 2048*1280*2)
    common_addr(c, True)
    for r in list(range(RP[0], RP[0]+3)) + list(range(RP[1], RP[1]+3)):
        c(f'v_mov_b32 v{r}, 0')
    c(f's_lshl_b32 s{sT0}, s{sG}, 3')
    c(f's_add_u32 s{sT0}, s{sT0}, s{sW}')
    c(f's_lshl_b32 s{sT1}, s{sT0}, 12')
    c(f's_mul_i32 s{sT2}, s{sW}, {KS}')
    c(f's_add_u32 s{sT2}, s{sT2}, {KB + 32}')
    c(f's_mov_b32 m0, s{sT2}')
    c(f'v_lshlrev_b32 v{T}, 4, v{vL}')
    for i in range(4):
        c(f'buffer_load_dwordx4 v{T}, s[{SRD_K}:{SRD_K+3}], s{sT1} offen offset:{1024*i} lds')
        c[-1].defs = {'dmaK'}
    c(f's_lshl_b32 s{sT1}, s{sT0}, 1')
    c(f'v_mov_b32 v{T+4}, s{sT1}')
    c(f'global_load_short_d16_hi v{T+1}, v{T+4}, {ptr(12)}')
    c(f'v_and_b32 v{T+5}, 7, v{vL}')
    c(f's_lshl_b32 s{sT1}, s{sG}, 6')
    c(f'v_lshl_add_u32 v{T+5}, v{T+5}, 3, s{sT1}')
    c(f'global_load_dwordx2 v[{T+2}:{T+3}], v{T+5}, {ptr(10)}')
    c += flat(b_stage_loads(0, BX))
    c += flat(b_stage_loads(1, BY))
    zero_pads(c)
    c(f'v_lshlrev_b32 v{vCo}, 16, v{T+2}')
    c(f'v_and_b32 v{vCo+1}, s{sHI}, v{T+2}')
    c(f'v_lshlrev_b32 v{vCo+2}, 16, v{T+3}')
    c(f'v_and_b32 v{vCo+3}, s{sHI}, v{T+3}')
    x = Ins('s_nop 0'); x.uses = {'dmaK'}; c.append(x)
    c(f's_mul_i32 s{sT2}, s{sW}, {KS}')
    c(f's_add_u32 s{sT2}, s{sT2}, {KB + 32}')
    c(f'v_mov_b32 v{T+4}, s{sT2}')
    c(f'ds_read_u16 v{T+5}, v{T+4}')
    c(f'v_lshlrev_b32 v{T+5}, 16, v{T+5}')
    c(f'v_add_f32 v{T+5}, v{T+5}, v{T+1}')
    c(f'v_cvt_pk_bf16_f32 v{T+5}, v{T+5}, v{T+5}')
    c(f'ds_write_b16 v{T+4}, v{T+5}')
    c += afrag_reads(range(0, 8))
    c += b_prep(0, BX)
    c += barrier()
    if DUMP == 'BX': dump_lds(c, XB, 8*CS + 8*KS); return c
    c += conv_with_sides(True)
    return c

def cmul(c, d, x, w):
    t = d if d != x else None
    tmp = KT
    c(f'v_pk_mul_f32 v[{tmp}:{tmp+1}], v[{x}:{x+1}], v[{w}:{w+1}] op_sel:[0,0] op_sel_hi:[1,0]')
    c(f'v_pk_fma_f32 v[{d}:{d+1}], v[{x}:{x+1}], v[{w}:{w+1}], v[{tmp}:{tmp+1}] op_sel:[1,1,0] op_sel_hi:[0,1,1] neg_lo:[1,0,0]')

class TmpRot:
    def __init__(self, base, n): self.base, self.n, self.i = base, n, 0
    def get(self):
        r = self.base + 2 * (self.i % self.n); self.i += 1; return r

def path_A():
    c = Code()
    srd(c, SRD_X0, 0, 2048*640*2)
    srd(c, SRD_O, 13, 2048*1280*2)
    common_addr(c, False)
    P = 16
    c(f's_lshl_b32 s{sT0}, s{sG}, 3')
    c(f's_add_u32 s{sT0}, s{sT0}, s{sW}')
    c(f's_lshl_b32 s{sT1}, s{sT0}, 8')
    c(f'v_lshl_add_u32 v{T}, v{vL}, 2, s{sT1}')
    for j in range(4):
        c(f'global_load_dword v{P+j}, v{T}, {ptr(1+j)}')
    c(f's_lshl_b32 s{sT1}, s{sT0}, 1')
    c(f'v_mov_b32 v{T+1}, s{sT1}')
    c(f'global_load_short_d16_hi v{P+4}, v{T+1}, {ptr(5)}')
    c(f'global_load_short_d16_hi v{P+5}, v{T+1}, {ptr(6)}')
    U = 232 - 0
    U = QA
    for st in range(4):
        c(f's_mov_b32 s{sOff}, {st*512*1280}')
        c(f's_mov_b32 s{sOff2}, {st*512*1280 + 5120}')
        for i in range(4):
            c(f'buffer_load_short_d16_hi v{U+4*st+i}, v{vRow}, s[{SRD_X0}:{SRD_X0+3}], s{sOff} offen offset:{1280*i}')
            c(f'buffer_load_ushort v{U+16+4*st+i}, v{vRow}, s[{SRD_X0}:{SRD_X0+3}], s{sOff2} offen offset:{1280*i}')
    zero_pads(c)
    c(f's_mul_i32 s{sT2}, s{sW}, {SCR}')
    c(f's_add_u32 s{sT0}, s{sT2}, {SCR_LO}')
    c(f's_add_u32 s{sT1}, s{sT2}, {SCR_HI - 4*SCR}')
    c(f's_cmp_lt_u32 s{sW}, 4')
    c(f's_cselect_b32 s{sT2}, s{sT0}, s{sT1}')
    vSW, vSR, vTW0, vTW1, vKW = 22, 23, 24, 25, 26
    c(f'v_lshl_add_u32 v{vSW}, v{vL}, 3, s{sT2}')
    c(f'v_and_b32 v{T}, 15, v{vL}')
    c(f'v_lshrrev_b32 v{T+1}, 4, v{vL}')
    c(f'v_mul_u32_u24 v{vSR}, {SCR_ROW}, v{T}')
    c(f'v_lshl_add_u32 v{vSR}, v{T+1}, 4, v{vSR}')
    c(f'v_add_u32 v{vSR}, s{sT2}, v{vSR}')
    c(f's_mov_b32 s60, s{sT2}')
    LOG2E = 0x3fb8aa3b; INV2PI = 0x3e22f983
    dt, dt2 = 28, 29
    c(f'v_mul_f32 v{dt}, {LOG2E}, v{P+4}')
    c(f'v_exp_f32 v{dt}, v{dt}')
    c(f'v_cvt_pk_bf16_f32 v{dt}, v{dt}, v{dt}')
    c(f'v_and_b32 v{dt}, s{sHI}, v{dt}')
    c(f'v_add_f32 v{dt2}, v{dt}, v{dt}')
    def M(j, k): return 32 + 20 * j + 2 * k
    ar = [72, 73]; ai = [74, 75]; e = [76, 77]; th = [78, 79]; t2 = [80, 81]
    for j in range(2):
        un = (lambda d, s: f'v_lshlrev_b32 v{d}, 16, v{s}') if j == 0 else (lambda d, s: f'v_and_b32 v{d}, s{sHI}, v{s}')
        c(un(ar[j], P)); c(un(ai[j], P + 1)); c(un(M(j,0), P + 2)); c(un(M(j,0) + 1, P + 3))
    for j in range(2): c(f'v_mul_f32 v{ar[j]}, {LOG2E}, v{ar[j]}')
    for j in range(2): c(f'v_exp_f32 v{ar[j]}, v{ar[j]}')
    c(f'v_cvt_pk_bf16_f32 v{e[0]}, v{ar[0]}, v{ar[1]}')
    c(f'v_and_b32 v{ar[1]}, s{sHI}, v{e[0]}')
    c(f'v_lshlrev_b32 v{ar[0]}, 16, v{e[0]}')
    for j in range(2):
        c(f'v_mul_f32 v{ar[j]}, -v{ar[j]}, v{dt}')
        c(f'v_mul_f32 v{ai[j]}, v{ai[j]}, v{dt}')
        c(f'v_mul_f32 v{M(j,0)}, v{M(j,0)}, v{dt2}')
        c(f'v_mul_f32 v{M(j,0)+1}, v{M(j,0)+1}, v{dt2}')
        c(f'v_mul_f32 v{ar[j]}, {LOG2E}, v{ar[j]}')
        c(f'v_mul_f32 v{ai[j]}, {INV2PI}, v{ai[j]}')
    for s, k in ((1, 1), (128, 5)):
        for j in range(2):
            if s == 1:
                c(f'v_exp_f32 v{e[j]}, v{ar[j]}')
                c(f'v_fract_f32 v{th[j]}, v{ai[j]}')
            else:
                c(f'v_mul_f32 v{t2[j]}, 0x43000000, v{ar[j]}')
                c(f'v_exp_f32 v{e[j]}, v{t2[j]}')
                c(f'v_mul_f32 v{th[j]}, 0x43000000, v{ai[j]}')
                c(f'v_fract_f32 v{th[j]}, v{th[j]}')
        for j in range(2):
            c(f'v_cos_f32 v{M(j,k)}, v{th[j]}')
            c(f'v_sin_f32 v{M(j,k)+1}, v{th[j]}')
        for j in range(2):
            c(f'v_mul_f32 v{M(j,k)}, v{M(j,k)}, v{e[j]}')
            c(f'v_mul_f32 v{M(j,k)+1}, v{M(j,k)+1}, v{e[j]}')
    tr = TmpRot(84, 4)
    def cm(d, x, w):
        t = tr.get()
        c(f'v_pk_mul_f32 v[{t}:{t+1}], v[{x}:{x+1}], v[{w}:{w+1}] op_sel:[0,0] op_sel_hi:[1,0]')
        c(f'v_pk_fma_f32 v[{d}:{d+1}], v[{x}:{x+1}], v[{w}:{w+1}], v[{t}:{t+1}] op_sel:[1,1,0] op_sel_hi:[0,1,1] neg_lo:[1,0,0]')
    for (src, dst) in ((1, 2), (5, 6), (2, 3), (6, 7), (3, 4), (7, 8)):
        for j in range(2): cm(M(j, dst), M(j, src), M(j, src))
    def CH(j, k): return 92 + 8 * j + 2 * k
    pk = TmpRot(108, 4)
    def emit_row(row, regs, neg_im=False):
        p = pk.get()
        for j in range(2):
            n = '-' if neg_im else ''
            c(f'v_cvt_pk_bf16_f32 v{p+j}, v{regs[j]}, {n}v{regs[j]+1}')
        c(f'ds_write_b64 v{vSW}, v[{p}:{p+1}] offset:{row*SCR_ROW}')
    YF, XF = 116, 148
    def read_frags(base):
        for s in range(8):
            c(f'ds_read_b128 v[{base+4*s}:{base+4*s+3}], v{vSR} offset:{64*s}')
    p = pk.get()
    c(f'v_mov_b32 v{p}, 0x3f80')
    c(f'v_mov_b32 v{p+1}, 0x3f80')
    c(f'ds_write_b64 v{vSW}, v[{p}:{p+1}]')
    emit_row(1, [M(0,4), M(1,4)], True)
    for j in range(2): cm(CH(j,3), M(j,4), M(j,4))
    for j in range(2): cm(CH(j,0), M(j,4), CH(j,3))
    emit_row(2, [CH(0,3), CH(1,3)], True)
    for j in range(2): cm(CH(j,1), CH(j,3), CH(j,3))
    emit_row(3, [CH(0,0), CH(1,0)], True)
    emit_row(4, [CH(0,1), CH(1,1)], True)
    for r in range(5, 16):
        k = 0 if r % 2 else 1
        for j in range(2): cm(CH(j,k), CH(j,k), CH(j,3))
        emit_row(r, [CH(0,k), CH(1,k)], True)
    read_frags(YF)
    for j in range(2): cm(CH(j,1), M(j,0), M(j,5))
    emit_row(0, [M(0,0), M(1,0)])
    emit_row(8, [CH(0,1), CH(1,1)])
    for j in range(2): cm(CH(j,0), M(j,0), M(j,1))
    for j in range(2): cm(CH(j,1), CH(j,1), M(j,1))
    emit_row(1, [CH(0,0), CH(1,0)]); emit_row(9, [CH(0,1), CH(1,1)])
    for b in range(2, 8):
        for j in range(2): cm(CH(j,0), CH(j,0), M(j,1))
        for j in range(2): cm(CH(j,1), CH(j,1), M(j,1))
        emit_row(b, [CH(0,0), CH(1,0)]); emit_row(8 + b, [CH(0,1), CH(1,1)])
    read_frags(XF)
    D0, D1, D2 = 180, 184, 188
    for j in range(2): cm(CH(j,0), M(j,0), M(j,6))
    for j in range(2): cm(CH(j,2), M(j,0), M(j,7))
    for j in range(2): cm(CH(j,1), CH(j,0), M(j,5))
    for s in range(8):
        cc = '0' if s == 0 else f'v[{D0}:{D0+3}]'
        c(f'v_mfma_f32_16x16x32_bf16 v[{D0}:{D0+3}], v[{XF+4*s}:{XF+4*s+3}], v[{YF+4*s}:{YF+4*s+3}], {cc}')
    emit_row(0, [CH(0,0), CH(1,0)]); emit_row(4, [CH(0,1), CH(1,1)]); emit_row(8, [CH(0,2), CH(1,2)])
    for j in range(2): cm(CH(j,3), CH(j,2), M(j,3))
    emit_row(9, [CH(0,3), CH(1,3)])
    for b in range(1, 4):
        for j in range(2): cm(CH(j,0), CH(j,0), M(j,2))
        for j in range(2): cm(CH(j,1), CH(j,1), M(j,2))
        for j in range(2): cm(CH(j,2), CH(j,2), M(j,5))
        for j in range(2): cm(CH(j,3), CH(j,2), M(j,3))
        emit_row(b, [CH(0,0), CH(1,0)]); emit_row(4 + b, [CH(0,1), CH(1,1)])
        emit_row(8 + 2*b, [CH(0,2), CH(1,2)]); emit_row(9 + 2*b, [CH(0,3), CH(1,3)])
    c(f'v_and_b32 v{T}, 15, v{vL}')
    c(f'v_lshrrev_b32 v{T+1}, 5, v{vL}')
    c(f'v_bfe_u32 v{T+2}, v{vL}, 4, 1')
    c(f'v_lshlrev_b32 v{T}, 4, v{T}')
    c(f'v_lshl_add_u32 v{T}, v{T+1}, 8, v{T}')
    c(f'v_lshl_add_u32 v{T}, v{T+2}, 3, v{T}')
    c(f's_mul_i32 s{sT0}, s{sW}, {KS}')
    c(f's_add_u32 s61, s{sT0}, {KB + 32}')
    c(f'v_add_u32 v{vKW}, s61, v{T}')
    c(f'v_mov_b32 v{T+3}, 0')
    c(f'v_cndmask_b32 v{T+3}, v{T+3}, v{P+5}, s[{sM0}:{sM0+1}]')
    c(f'v_add_f32 v{D0}, v{D0}, v{T+3}')
    c(f'v_cvt_pk_bf16_f32 v{T+4}, v{D0}, v{D0+1}')
    c(f'v_cvt_pk_bf16_f32 v{T+5}, v{D0+2}, v{D0+3}')
    c(f'ds_write_b64 v{vKW}, v[{T+4}:{T+5}]')
    read_frags(XF)
    for j in range(2): cm(CH(j,0), M(j,0), M(j,8))
    for j in range(2): cm(CH(j,1), CH(j,0), M(j,5))
    for s in range(8):
        cc = '0' if s == 0 else f'v[{D1}:{D1+3}]'
        c(f'v_mfma_f32_16x16x32_bf16 v[{D1}:{D1+3}], v[{XF+4*s}:{XF+4*s+3}], v[{YF+4*s}:{YF+4*s+3}], {cc}')
    emit_row(0, [CH(0,0), CH(1,0)]); emit_row(1, [CH(0,1), CH(1,1)])
    for r in range(2, 9, 2):
        for j in range(2): cm(CH(j,0), CH(j,0), M(j,6))
        emit_row(r, [CH(0,0), CH(1,0)])
        if r + 1 < 9:
            for j in range(2): cm(CH(j,1), CH(j,1), M(j,6))
            emit_row(r + 1, [CH(0,1), CH(1,1)])
    read_frags(XF)
    c(f'v_and_b32 v{T}, 15, v{vL}')
    c(f'v_lshrrev_b32 v{T+1}, 4, v{vL}')
    c(f'v_lshlrev_b32 v{T+2}, 3, v{T}')
    c(f'v_lshlrev_b32 v{T+3}, 2, v{T}')
    c(f'v_cmp_gt_u32 vcc, 32, v{vL}')
    c(f'v_cndmask_b32 v{T+2}, v{T+3}, v{T+2}, vcc')
    c(f'v_lshl_add_u32 v{T+2}, v{T+1}, 7, v{T+2}')
    c(f'v_add_u32 v{vTW0}, s60, v{T+2}')
    c(f'v_mov_b32 v{T+3}, 64')
    c(f'v_mov_b32 v{T+4}, 4')
    c(f'v_cndmask_b32 v{T+3}, v{T+3}, v{T+4}, vcc')
    c(f'v_add_u32 v{vTW1}, v{vTW0}, v{T+3}')
    c(f'v_cvt_pk_bf16_f32 v{T+4}, v{D1}, v{D1+1}')
    c(f'v_cvt_pk_bf16_f32 v{T+5}, v{D1+2}, v{D1+3}')
    for s in range(8):
        cc = '0' if s == 0 else f'v[{D2}:{D2+3}]'
        c(f'v_mfma_f32_16x16x32_bf16 v[{D2}:{D2+3}], v[{YF+4*s}:{YF+4*s+3}], v[{XF+4*s}:{XF+4*s+3}], {cc}')
        if s == 7: pass
    c(f'ds_write_b32 v{vTW0}, v{T+4}')
    c(f'ds_write_b32 v{vTW1}, v{T+5}')
    c(f'v_and_b32 v{T}, 15, v{vL}')
    c(f'v_lshrrev_b32 v{T+1}, 4, v{vL}')
    c(f'v_lshlrev_b32 v{T}, 5, v{T}')
    c(f'v_lshl_add_u32 v{T}, v{T+1}, 3, v{T}')
    c(f'v_add_u32 v{T}, s60, v{T}')
    c(f'v_cvt_pk_bf16_f32 v{T+4}, v{D2}, v{D2+1}')
    c(f'v_cvt_pk_bf16_f32 v{T+5}, v{D2+2}, v{D2+3}')
    c(f'ds_write_b64 v{T}, v[{T+4}:{T+5}] offset:512')
    c(f's_mov_b32 s{sSel}, 0x01000100')
    c(f's_mov_b32 s{sSel+1}, 0x03020302')
    c(f's_mov_b32 s{sSel+2}, 0x05040302')
    a = 92
    c(f'v_and_b32 v{T}, 31, v{vL}')
    c(f'v_lshl_add_u32 v{T+1}, v{T}, 3, s60')
    c(f'ds_read_b64 v[{a}:{a+1}], v{T+1}')
    c(f'ds_read_b32 v{a+2}, v{T+1} offset:8')
    c(f'v_lshl_add_u32 v{T+2}, v{T}, 4, s61')
    c(f'v_lshl_add_u32 v{T+3}, v{vL}, 2, s60')
    c(f'ds_read2_b32 v[{a+4}:{a+5}], v{T+3} offset0:64 offset1:65')
    c(f'v_lshl_add_u32 v{T+4}, v{vL}, 4, s61')
    c(f'v_lshl_add_u32 v{T+5}, v{vL}, 1, s60')
    c(f'ds_read_u16 v{a+6}, v{T+5} offset:512')
    c(f'ds_read_u16 v{a+7}, v{T+5} offset:514')
    c(f'ds_read_u16 v{a+8}, v{T+5} offset:640')
    c(f'ds_read_u16 v{a+9}, v{T+5} offset:642')
    o = 104
    c(f'v_perm_b32 v{o}, v{a}, v{a}, s{sSel}')
    c(f'v_perm_b32 v{o+1}, v{a+1}, v{a}, s{sSel+2}')
    c(f'v_perm_b32 v{o+2}, v{a+1}, v{a+1}, s{sSel}')
    c(f'v_perm_b32 v{o+3}, v{a+2}, v{a+1}, s{sSel+2}')
    c(f'ds_write_b128 v{T+2}, v[{o}:{o+3}] offset:512')
    c(f'v_perm_b32 v{o+4}, v{a+4}, v{a+4}, s{sSel}')
    c(f'v_mov_b32 v{o+5}, v{a+4}')
    c(f'v_perm_b32 v{o+6}, v{a+4}, v{a+4}, s{sSel+1}')
    c(f'v_perm_b32 v{o+7}, v{a+5}, v{a+5}, s{sSel}')
    c(f'ds_write_b128 v{T+4}, v[{o+4}:{o+7}] offset:1024')
    c(f'v_and_b32 v{T+6}, 1, v{vL}')
    c(f'v_mov_b32 v{T+7}, 0x05040100')
    c(f'v_mov_b32 v{T+8}, 0x05040504')
    c(f'v_cmp_eq_u32 vcc, 1, v{T+6}')
    c(f'v_cndmask_b32 v{T+7}, v{T+7}, v{T+8}, vcc')
    for h in range(2):
        r = o + 8 + 4 * h
        u = a + 6 + 2 * h
        c(f'v_perm_b32 v{r}, v{u}, v{u}, s{sSel}')
        c(f'v_mov_b32 v{r+1}, v{r}')
        c(f'v_perm_b32 v{r+2}, v{u+1}, v{u}, v{T+7}')
        c(f'v_perm_b32 v{r+3}, v{u+1}, v{u+1}, s{sSel}')
        c(f'ds_write_b128 v{T+4}, v[{r}:{r+3}] offset:{2048 + 1024*h}')
    for st in range(4):
        for i in range(4):
            c(f'v_or_b32 v{U+4*st+i}, v{U+4*st+i}, v{U+16+4*st+i}')
            c(f'ds_write_b32 v{vXw}, v{U+4*st+i} offset:{i*RS + 256*(3-st)}')
    for r in list(range(RP[0], RP[0]+3)) + list(range(RP[1], RP[1]+3)):
        c(f'v_mov_b32 v{r}, 0')
    c += afrag_reads(range(0, 8))
    c += barrier()
    if DUMP == 'AX': dump_lds(c, XB, 8*CS + 8*KS); return c
    c += conv_with_sides(False)
    return c

def main():
    pro = Code()
    pro(f's_cmp_ge_u32 s2, 160')
    pro('s_cbranch_scc1 L_exit')
    pro(f's_load_dwordx16 s[{PTR}:{PTR+15}], s[0:1], 0')
    pro(f's_load_dwordx8 s[{PTR+16}:{PTR+23}], s[0:1], 64')
    pro(f's_load_dwordx4 s[{PTR+24}:{PTR+27}], s[0:1], 96')
    pro(f'v_and_b32 v{vL}, 63, v0')
    pro(f'v_lshrrev_b32 v{T}, 6, v0')
    pro(f's_and_b32 s{sT0}, s2, 7')
    pro(f's_lshr_b32 s{sT1}, s2, 3')
    pro(f'v_readfirstlane_b32 s{sW}, v{T}')
    pro(f's_mul_i32 s{sG}, s{sT0}, 10')
    pro(f's_cmp_ge_u32 s{sT1}, 10')
    pro(f's_cselect_b32 s{sT2}, 10, 0')
    pro(f's_sub_u32 s{sT0}, s{sT1}, s{sT2}')
    pro(f's_add_u32 s{sG}, s{sG}, s{sT0}')
    pro('s_waitcnt lgkmcnt(0)')
    pro(f's_cmp_ge_u32 s{sT1}, 10')
    pro('s_cbranch_scc1 L_B')
    A = finalize(list(pro) + list(path_A()) )
    npro = len(finalize(list(pro)))
    Bfull = finalize(list(pro) + list(path_B()))
    lines = []
    P = finalize(list(pro))
    lines += [x.text for x in P]
    lines += [x.text for x in A[npro:]]
    lines.append('s_endpgm')
    lines.append('L_B:')
    lines += [x.text for x in Bfull[npro:]]
    lines.append('L_exit:')
    lines.append('s_endpgm')
    hdr = open('concat_heads__ssm_conv_s4d__ssm_conv_h3__prompt.s.ref').read().split('\n')
    head = []
    for l in hdr:
        if l.startswith('; @launch'): break
        head.append(l)
    txt = '\n'.join(head) + '\n'
    txt += f'; @launch grid=(160,1,1) block=(512,1,1) lds={LDS_TOTAL}\n'
    txt += '.amdgcn_target "amdgcn-amd-amdhsa--gfx950"\n.text\n'
    txt += f'.globl {NAME}\n.p2align 8\n.type {NAME},@function\n{NAME}:\n'
    for l in lines:
        txt += (l if l.endswith(':') else '  ' + l) + '\n'
    txt += f'''.section .rodata,"a"
.p2align 6
.amdhsa_kernel {NAME}
  .amdhsa_next_free_vgpr {256 if STAMP else NVGPR}
  .amdhsa_next_free_sgpr 96
  .amdhsa_accum_offset {256 if STAMP else NVGPR}
  .amdhsa_group_segment_fixed_size 0
  .amdhsa_kernarg_size 128
  .amdhsa_user_sgpr_count 2
  .amdhsa_user_sgpr_kernarg_segment_ptr 1
  .amdhsa_system_sgpr_workgroup_id_x 1
.end_amdhsa_kernel
'''
    sys.stdout.write(txt)

main()
```
